```python
import torch

def _softmax(x, axis=-1):
    return torch.softmax(x, dim=axis)
def _gelu(x):
    return torch.nn.functional.gelu(x, approximate="tanh")
def _silu(x):
    return torch.nn.functional.silu(x)
def _sigmoid(x):
    return torch.sigmoid(x)
def _layernorm(x, axis=-1, eps=1e-5):
    m = x.mean(dim=axis, keepdim=True)
    v = x.var(dim=axis, keepdim=True, unbiased=False)
    return (x - m) / torch.sqrt(v + eps)
def _scatter_add(tgt, idx, src, axis=0):
    return tgt.clone().index_add_(axis, idx, src)
def _segment_sum(src, seg, n):
    out = torch.zeros((n,) + src.shape[1:], dtype=src.dtype)
    return out.index_add_(0, seg, src)
def _pad(x, pw):
    flat = tuple(v for pair in reversed(pw) for v in pair)
    return torch.nn.functional.pad(x, flat)

kernel_name = 'recurrent_scan__sliding_block_cached__mixer_channel_mlp__decode'

def setup_inputs():

    _w = (lambda a: (lambda t: t.to(torch.bfloat16) if t.is_floating_point() else t)(torch.as_tensor(a)))
    def _A_setup():
        B, Sq, D = 2, 1, 1024
        Hq, Hkv, Sk, Dh = 32, 4, 32768, 128
        assert Hq % Hkv == 0, (Hq, Hkv)
        return {
            "x": _w((lambda *s: torch.randn(*s, dtype=torch.bfloat16) * 0.1)(B, Sq, D)),
            "k_cache": _w((lambda *s: torch.randn(*s, dtype=torch.bfloat16) * 0.8)(B, Hkv, Sk, Dh)),
            "v_cache": _w((lambda *s: torch.randn(*s, dtype=torch.bfloat16) * 3.2)(B, Hkv, Sk, Dh)),
            "wq": _w((lambda *s: torch.randn(*s, dtype=torch.bfloat16) * 0.8)(D, Hq * Dh) * (D ** -0.5)),
            "wo": _w((lambda *s: torch.randn(*s, dtype=torch.bfloat16) * 3.2)(Hq * Dh, D) * ((Hq * Dh) ** -0.5)),
        }
    _A_in = _A_setup()

    def _B_setup():
        B, S, D, F = 2, 1, 1024, 3584
        return {
            "x": _w((lambda *s: torch.randn(*s, dtype=torch.bfloat16) * 0.1)(B, S, D)),
            "w1": _w((lambda *s: torch.randn(*s, dtype=torch.bfloat16) * 3.2)(D, F) * (D ** -0.5)),
            "b1": _w((lambda *s: torch.randn(*s, dtype=torch.bfloat16) * 3.2)(F)),
            "w2": _w((lambda *s: torch.randn(*s, dtype=torch.bfloat16) * 3.2)(F, D) * (F ** -0.5)),
            "b2": _w((lambda *s: torch.randn(*s, dtype=torch.bfloat16) * 3.2)(D)),
        }
    _B_in = _B_setup()

    return {
        "A_x": _A_in["x"],
        "A_k_cache": _A_in["k_cache"],
        "A_v_cache": _A_in["v_cache"],
        "A_wq": _A_in["wq"],
        "A_wo": _A_in["wo"],
        "B_x": _B_in["x"],
        "B_w1": _B_in["w1"],
        "B_b1": _B_in["b1"],
        "B_w2": _B_in["w2"],
        "B_b2": _B_in["b2"],
    }

def reference(A_x, A_k_cache, A_v_cache, A_wq, A_wo, B_x, B_w1, B_b1, B_w2, B_b2):
    def _A_ref(x, k_cache, v_cache, wq, wo):
        B, Sq, D = x.shape
        Hq, Dh = 32, 128
        Hkv, Sk = k_cache.shape[1], k_cache.shape[2]
        W = min(4096, max(256, Sk // 4))
        rep = Hq // Hkv
        q = (lambda x, *d: x.permute(*d))((x @ wq).reshape(B, Sq, Hq, Dh), 0, 2, 1, 3)
        k = (lambda x, n, axis: torch.repeat_interleave(x, n, dim=axis))(k_cache[:, :, Sk - W:, :], rep, axis=1)
        v = (lambda x, n, axis: torch.repeat_interleave(x, n, dim=axis))(v_cache[:, :, Sk - W:, :], rep, axis=1)
        scores = torch.einsum("bhqd,bhkd->bhqk", q, k) * (Dh ** -0.5)
        p = _softmax(scores, axis=-1)
        o = torch.einsum("bhqk,bhkd->bhqd", p, v)
        return (lambda x, *d: x.permute(*d))(o, 0, 2, 1, 3).reshape(B, Sq, Hq * Dh) @ wo

    def _B_ref(x, w1, b1, w2, b2):
        y = _layernorm(x, axis=-1)
        h = _gelu(torch.einsum("bsd,df->bsf", y, w1) + b1)
        return torch.einsum("bsf,fd->bsd", h, w2) + b2

    x = A_x
    xn = _layernorm(x, axis=-1)
    s = _A_ref(xn, A_k_cache, A_v_cache, A_wq, A_wo)
    g = _silu(_B_ref(xn, B_w1, B_b1, B_w2, B_b2))
    return x + s * g
```

```python
import re

TRANS = ("v_exp_f32","v_log_f32","v_rcp_f32","v_rsq_f32","v_sqrt_f32","v_sin_f32","v_cos_f32")

def _regs(tok):
    tok = tok.strip()
    tok = tok.lstrip('-')
    m = re.fullmatch(r"(?:abs\()?\|?([vsa])(\d+)\|?\)?", tok)
    if m: return {(m.group(1), int(m.group(2)))}
    m = re.fullmatch(r"([vsa])\[(\d+):(\d+)\]", tok)
    if m: return {(m.group(1), i) for i in range(int(m.group(2)), int(m.group(3)) + 1)}
    if tok in ("vcc","vcc_lo","vcc_hi"): return {("vcc",0)}
    if tok in ("exec","exec_lo","exec_hi"): return {("exec",0)}
    if tok == "m0": return {("m0",0)}
    return set()

class Ins:
    def __init__(self, text):
        self.text = text
        t = text.split(";")[0].strip()
        self.is_label = t.endswith(":")
        self.is_dir = t.startswith(".") or t == ""
        self.op = t.split()[0] if t else ""
        rest = t[len(self.op):].strip()
        ops = []; depth = 0; cur = ""
        for ch in rest:
            if ch == "[": depth += 1
            if ch == "]": depth -= 1
            if ch == "," and depth == 0: ops.append(cur); cur = ""
            else: cur += ch
        if cur.strip(): ops.append(cur)
        self.mods = ""
        if ops:
            last = ops[-1].strip().split()
            ops[-1] = last[0]; self.mods = " ".join(last[1:])
        self.ops = [o.strip() for o in ops]
        op = self.op
        self.mfma = op.startswith("v_mfma")
        self.valu = op.startswith("v_") and not self.mfma
        self.trans = any(op.startswith(x) for x in TRANS)
        self.dpp = self.valu and (("quad_perm" in t) or ("row_" in t) or op.endswith("_dpp"))
        self.perml = op.startswith("v_permlane")
        self.rdlane = op.startswith("v_readfirstlane") or op.startswith("v_readlane")
        self.wrlane = op.startswith("v_writelane")
        self.vmem = op.startswith("buffer_") or op.startswith("global_")
        self.ds = op.startswith("ds_")
        self.salu = op.startswith("s_")
        self.ldsdma = self.vmem and (" lds" in " " + self.mods or "load_lds" in op)
        R = [_regs(o) for o in self.ops]
        self.w = set(); self.r = set(); self.srcc = set(); self.ab = set(); self.stdata = set()
        if self.mfma:
            self.w = R[0]; self.ab = R[1] | R[2]; self.srcc = R[3]; self.r = self.ab | self.srcc
        elif self.valu:
            if self.perml:
                self.w = R[0] | R[1]; self.r = R[0] | R[1]
            else:
                self.w = set(R[0]); self.r = set().union(*R[1:]) if len(R) > 1 else set()
                if op.startswith(("v_fmac","v_pk_fmac","v_dot2c")) or self.wrlane or self.dpp: self.r |= R[0]
                if "_co_" in op: self.w |= R[1]
                if op.startswith("v_cmpx"): self.w |= {("exec",0)}
        elif self.vmem:
            if "store" in op or ("atomic" in op):
                allr = set().union(*R)
                self.r = allr
                if op.startswith("buffer_"): self.stdata = R[0]
                else: self.stdata = R[1]
                if "atomic" in op and "sc0" in self.mods: self.w = R[0]
            elif self.ldsdma:
                self.r = set().union(*R) | {("m0",0)}
            else:
                self.w = R[0]; self.r = set().union(*R[1:])
        elif self.ds:
            if op.startswith(("ds_read","ds_bpermute","ds_permute","ds_swizzle")) or "_rtn" in op:
                self.w = R[0]; self.r = set().union(*R[1:]) if len(R) > 1 else set()
            else:
                self.r = set().union(*R)
        elif self.salu:
            if op.startswith(("s_cmp","s_cbranch","s_branch","s_waitcnt","s_nop","s_barrier","s_sleep","s_endpgm","s_setprio","s_bitcmp")):
                self.r = set().union(*R) if R else set()
            else:
                self.w = set(R[0]) if R else set(); self.r = set().union(*R[1:]) if len(R) > 1 else set()
                if "saveexec" in op: self.w |= {("exec",0)}
        self.nstates = 0 if (self.is_label or self.is_dir) else 1
        if op == "s_nop": self.nstates = int(self.ops[0], 0) + 1
        self.passes = 0
        if self.mfma:
            self.passes = 8 if "32x32" in op else 4
            if "16x16x4_f32" in op: self.passes = 8

def need(p, c):
    n = 0
    vw = {x for x in p.w if x[0] in "va"}
    sw = {x for x in p.w if x[0] in ("s","vcc")}
    if p.valu:
        if c.dpp and (vw & c.r): n = max(n, 2)
        if c.perml and (vw & c.r): n = max(n, 2)
        if c.mfma and (vw & c.r): n = max(n, 2)
        if c.rdlane and (vw & c.r): n = max(n, 1)
        if p.trans and (c.valu or c.mfma) and not c.trans and (vw & c.r): n = max(n, 1)
        if sw:
            if c.vmem and (sw & c.r): n = max(n, 5)
            if c.valu and (sw & c.r): n = max(n, 4 if (c.rdlane or c.wrlane) else 2)
            if c.valu and c.op.startswith(("v_cndmask","v_addc","v_subb")) and ("vcc",0) in sw: n = max(n, 2)
            if c.salu and (sw & c.r): n = max(n, 1)
            if c.op.startswith("s_cbranch_vcc") and ("vcc",0) in sw: n = max(n, 1)
        if ("exec",0) in p.w:
            if c.dpp: n = max(n, 5)
            if c.mfma or c.perml or c.rdlane or c.wrlane: n = max(n, 4)
    if (p.vmem or p.ds) and False: pass
    if p.mfma:
        big = {4: 8, 8: 12}[p.passes]; mid = {4: 6, 8: 10}[p.passes]; war = {4: 3, 8: 7}[p.passes]
        if c.mfma:
            if p.w & c.ab: n = max(n, big)
            if (p.w & c.srcc) and p.w != c.srcc: n = max(n, mid)
            if (p.w & c.w) and not (p.w & c.srcc): n = max(n, big)
        elif c.valu or c.vmem or c.ds:
            if p.w & (c.r | c.w): n = max(n, big)
            if c.valu and (p.srcc & c.w): n = max(n, war)
    if p.salu and ("m0",0) in p.w and c.ldsdma: n = max(n, 1)
    if p.vmem and len(p.stdata) >= 3 and (p.stdata & c.w): n = max(n, 2)
    return n

def pad(lines):
    out = []
    for text in lines:
        c = Ins(text)
        if not (c.is_label or c.is_dir):
            dist = 0; req = 0
            for p in reversed(out):
                if dist >= 12: break
                if not (p.is_label or p.is_dir):
                    k = need(p, c) - dist
                    if k > req: req = k
                    if p.op in ("s_branch","s_endpgm","s_setpc_b64"): break
                dist += p.nstates
            if req > 0:
                out.append(Ins(f"s_nop {req-1}"))
        out.append(c)
    return [i.text for i in out]

class Asm:
    def __init__(self): self.L = []
    def __call__(self, s):
        for x in s.split("\n"):
            x = x.strip()
            if x: self.L.append(x)
    def text(self):
        return "\n".join(("" if (l.endswith(":") or l.startswith(".")) else "    ") + l for l in pad(self.L))
```

```python
import sys, struct
from asmlib import Asm
KNAME = "recurrent_scan__sliding_block_cached__mixer_channel_mlp__decode_kernel"
REF = "recurrent_scan__sliding_block_cached__mixer_channel_mlp__decode.s.ref"

def f2h(x): return "0x%08x" % struct.unpack("<I", struct.pack("<f", x))[0]
LOG2E = 1.4426950408889634

WS_EPOCH = 0
WS_QP = 0x010000
WS_QF = 0x050000
WS_OF = 0x058000
WS_HP = 0x060000
WS_FP = 0x0A0000
WS_OP = 0x120000
WS_END = 0x220000
WS_STAMP = 0x800000
L_K = 0; L_V = 32768; L_B = 65536
O_RQ = 0; O_RH = 8192; O_FIN = 16384; O_XN = 32768; O_Y = 36864; O_QL = 40960; O_PL = 43520; O_STM = 45568; O_STL = 45696
O_CNT = 45824
C_QP = O_CNT; C_HP = O_CNT+4; C_K = O_CNT+8; C_V = O_CNT+12; C_Y = O_CNT+16; C_Q = O_CNT+20; C_P = O_CNT+24; C_TAG = O_CNT+28
LDS_BYTES = L_B + O_CNT + 64
SPIN = 1 << 16

def gen(diag=False, D=3, D0=None, gpos=19, st_out="sc1", prefetch=True):
    a = Asm()
    uid = [0]
    def lab(p):
        uid[0] += 1; return f"L{p}{uid[0]}"
    def stamp(i):
        if diag: a(f"s_memrealtime s[{64+2*i}:{65+2*i}]")
    def spin_bound(back):
        a(f"s_add_u32 s52, s52, 1\ns_cmp_lt_u32 s52, {SPIN}\ns_cbranch_scc1 {back}\ns_branch Lexit")
    def wait_lds(off, target, vt="v6"):
        l = lab("w"); d = lab("d")
        a(f"{l}:\nds_read_b32 {vt}, v7 offset:{off}\ns_waitcnt lgkmcnt(0)\nv_readfirstlane_b32 s44, {vt}\ns_cmp_ge_u32 s44, {target}\ns_cbranch_scc1 {d}")
        spin_bound(l)
        a(f"{d}:")
    def signal(off):
        a(f"s_mov_b64 exec, 1\nds_add_u32 v7, v103 offset:{off}\ns_mov_b64 exec, -1")
    def treduce(r):
        a(f"""v_permlane16_swap_b32 v{r}, v{r+1}
        v_permlane16_swap_b32 v{r+2}, v{r+3}
        v_add_f32 v{r}, v{r}, v{r+1}
        v_add_f32 v{r+2}, v{r+2}, v{r+3}
        v_permlane32_swap_b32 v{r}, v{r+2}
        v_add_f32 v{r}, v{r}, v{r+2}""")
    def regather(z, g0):
        a(f"""v_mov_b32 v{g0}, v{z}
        v_permlane16_swap_b32 v{g0}, v{z}
        v_cvt_pk_bf16_f32 v{g0+1}, v{g0}, v{z}
        v_mov_b32 v{g0}, v{g0+1}
        v_permlane32_swap_b32 v{g0}, v{g0+1}""")
    def allred_rows(op, r, t):
        a(f"""v_mov_b32 v{t}, v{r}
        v_permlane16_swap_b32 v{t}, v{r}
        {op} v{r}, v{r}, v{t}
        v_mov_b32 v{t}, v{r}
        v_permlane32_swap_b32 v{t}, v{r}
        {op} v{r}, v{r}, v{t}""")
    def allred64(r, t):
        for m in ("quad_perm:[1,0,3,2]", "quad_perm:[2,3,0,1]", "row_half_mirror", "row_ror:8"):
            a(f"v_add_f32 v{r}, v{r}, v{r} {m} row_mask:0xf bank_mask:0xf")
        allred_rows("v_add_f32", r, t)
    def bf16r(d, s):
        a(f"v_cvt_pk_bf16_f32 v{d}, v{s}, v{s}\nv_and_b32 v{d}, 0xffff0000, v{d}")
    def tagchk24(g, t0, t1):
        a(f"v_bitop3_b32 v{t0}, v{g}, v{g+1}, v100 bitop3:0x7e\nv_bitop3_b32 v{t1}, v{g+2}, v{g+3}, v100 bitop3:0x7e")

    a("s_cmp_ge_u32 s2, 256\ns_cbranch_scc1 Lend")
    a("s_load_dwordx16 s[4:19], s[0:1], 0\ns_load_dwordx8 s[20:27], s[0:1], 64\ns_load_dwordx2 s[28:29], s[0:1], 96")
    if diag:
        for i in range(64, 96): a(f"s_mov_b32 s{i}, 0")
        stamp(0)
    a("""v_lshrrev_b32 v2, 6, v0
    v_and_b32 v1, 63, v0
    v_readfirstlane_b32 s3, v2
    s_and_b32 s30, s2, 7
    s_lshr_b32 s31, s2, 3
    v_lshrrev_b32 v2, 4, v1
    v_and_b32 v3, 15, v1
    s_mov_b32 s35, 0x20000
    s_mov_b32 s39, 0x20000
    s_mov_b32 s43, 0x20000
    s_mov_b32 s52, 0
    s_cmp_ge_u32 s3, 8
    s_cbranch_scc1 Lhelper""")

    ops = []
    def wait_for(name):
        n = len(ops) - 1 - ops.index(name)
        a(f"s_waitcnt vmcnt({n})")
    def srd(p, nbytes): a(f"s_mov_b32 s32, s{p}\ns_mov_b32 s33, s{p+1}\ns_mov_b32 s34, {nbytes}")
    a(f"""v_lshlrev_b32 v4, 18, v2
    v_lshl_add_u32 v4, v3, 4, v4
    s_lshl_b32 s45, s30, 20
    s_lshl_b32 s44, s31, 8
    s_add_u32 s45, s45, s44
    s_lshl_b32 s44, s3, 15
    s_add_u32 s45, s45, s44
    s_add_u32 s46, s45, 8192
    s_add_u32 s47, s45, 16384
    s_add_u32 s48, s45, 24576
    s_mov_b32 s34, {8<<20}
    s_waitcnt lgkmcnt(0)
    s_mov_b32 s32, s10
    s_mov_b32 s33, s11""")
    stamp(1)
    def setup(m):
        if m == 1:
            srd(6, 64 << 20)
            a(f"""s_lshl_b32 s45, s30, 23
            s_lshl_b32 s44, s31, 15
            s_add_u32 s45, s45, s44
            s_lshl_b32 s44, s3, 12
            s_add_u32 s45, s45, s44
            s_add_u32 s45, s45, 0x700000
            s_add_u32 m0, s44, {L_K}
            v_xor_b32 v4, v3, v2
            v_lshlrev_b32 v4, 4, v4
            v_lshl_add_u32 v4, v2, 8, v4""")
        elif m == 2:
            a(f"""s_mov_b32 s32, s8
            s_mov_b32 s33, s9
            s_lshl_b32 s44, s3, 12
            s_add_u32 m0, s44, {L_V}
            v_lshlrev_b32 v4, 1, v2
            v_xor_b32 v4, v3, v4
            v_lshlrev_b32 v4, 4, v4
            v_lshl_add_u32 v4, v2, 8, v4""")
        elif m == 3:
            srd(16, 7 << 20)
            a(f"""s_mul_i32 s45, s30, {128*7168}
            s_mul_i32 s44, s31, 224
            s_add_u32 s45, s45, s44
            s_mul_i32 s44, s3, {4*7168}
            s_add_u32 s45, s45, s44
            s_add_u32 s46, s45, 7168
            s_add_u32 s47, s45, {2*7168}
            s_add_u32 s48, s45, {3*7168}
            v_mul_u32_u24 v4, {32*7168}, v2
            v_lshl_add_u32 v4, v3, 4, v4
            v_mov_b32 v6, 0x40000000
            v_cmp_gt_u32 vcc, 14, v3
            v_cndmask_b32 v4, v6, v4, vcc""")
        elif m == 4:
            srd(12, 8 << 20)
            a(f"""s_lshl_b32 s45, s31, 18
            s_lshl_b32 s44, s30, 8
            s_add_u32 s45, s45, s44
            s_lshl_b32 s44, s3, 15
            s_add_u32 s45, s45, s44
            s_add_u32 s46, s45, 4096
            v_lshlrev_b32 v4, 13, v2
            v_lshl_add_u32 v4, v3, 4, v4""")
        elif m == 5:
            srd(20, 7 << 20)
            a(f"""s_mul_i32 s45, s31, {112*2048}
            s_lshl_b32 s44, s30, 8
            s_add_u32 s45, s45, s44
            s_lshl_b32 s44, s3, 15
            s_add_u32 s45, s45, s44
            s_cmp_eq_u32 s3, 7
            s_cselect_b32 s45, 0x40000000, s45
            s_add_u32 s46, s45, 4096""")
    def issue(n):
        m, t = divmod(n, 4)
        if m in (0, 3):
            a(f"buffer_load_dwordx4 v[{16+4*t}:{19+4*t}], v4, s[32:35], s{45+t} offen nt")
        elif m == 1:
            a(f"buffer_load_dwordx4 v4, s[32:35], s45 offen offset:{1024*t} nt lds")
            if t < 3: a(f"v_xor_b32 v4, {(64*t) ^ (64*(t+1))}, v4")
        elif m == 2:
            a(f"buffer_load_dwordx4 v4, s[32:35], s45 offen offset:{1024*t} nt lds")
            if t < 3: a("v_xor_b32 v4, 128, v4")
        else:
            base = 32 if m == 4 else 48
            a(f"buffer_load_dwordx4 v[{base+4*t}:{base+3+4*t}], v4, s[32:35], s{45+t//2} offen offset:{2048*(t&1)} nt")
        ops.append(n)
    def build_A(dst, p0):
        for t in range(4):
            for r in range(4):
                a(f"v_perm_b32 v{dst+4*t+r}, v{p0+t//2}, v{p0+t//2}, v{8+4*(t&1)+r}")
    def gemv_partial(o_src, w0, o_red, vpos, cnt, wsoff, st, chk=None):
        if chk is not None: wait_lds(chk, 2)
        a(f"ds_read_b64 v[88:89], v5 offset:{o_src}\ns_waitcnt lgkmcnt(0)")
        build_A(64, 88)
        for t in range(4):
            a(f"v_mfma_f32_16x16x32_bf16 v[80:83], v[{64+4*t}:{67+4*t}], v[{w0+4*t}:{w0+3+4*t}], {'0' if t == 0 else 'v[80:83]'}")
        a(f"ds_write_b128 v{vpos}, v[80:83] offset:{o_red}")
        skip = lab("nl")
        a(f"""s_mov_b64 exec, 1
        ds_add_rtn_u32 v6, v7, v103 offset:{cnt}
        s_mov_b64 exec, -1
        s_waitcnt lgkmcnt(0)
        v_readfirstlane_b32 s44, v6
        s_cmp_eq_u32 s44, 7
        s_cbranch_scc0 {skip}""")
        for w in range(8): a(f"ds_read_b128 v[{108+4*w}:{111+4*w}], v104 offset:{o_red+1024*w}")
        a(f"s_lshl_b32 s44, s31, 13\ns_lshl_b32 s49, s30, 10\ns_add_u32 s44, s44, s49\ns_add_u32 s44, s44, {wsoff}\ns_waitcnt lgkmcnt(0)")
        for (x, y) in ((0,1),(2,3),(4,5),(6,7),(0,2),(4,6),(0,4)):
            for h in (0, 2):
                a(f"v_pk_add_f32 v[{108+4*x+h}:{109+4*x+h}], v[{108+4*x+h}:{109+4*x+h}], v[{108+4*y+h}:{109+4*y+h}]")
        for k in range(4): a(f"v_bfi_b32 v{108+k}, s50, v{108+k}, v100")
        a(f"buffer_store_dwordx4 v[108:111], v105, s[36:39], s44 offen sc1")
        stamp(st)
        a(f"{skip}:")
    def consts():
        a(f"""s_mov_b32 s36, s28
        s_mov_b32 s37, s29
        s_mov_b32 s38, {WS_END}
        s_mov_b32 s50, 0xffffff00
        s_mov_b32 s51, 0xff
        v_mov_b32 v7, {L_B}
        v_mov_b32 v103, 1
        v_mov_b32 v90, 0x0c0c0100
        v_mov_b32 v91, 0x01000c0c
        v_and_b32 v6, 1, v3
        v_cmp_eq_u32 vcc, 1, v6
        v_mov_b32 v92, 0x0c0c0302
        v_mov_b32 v93, 0x03020c0c
        v_cndmask_b32 v90, v90, v91, vcc
        v_cndmask_b32 v92, v92, v93, vcc
        v_mov_b32 v91, 0x0c0c0c0c
        v_bfe_u32 v6, v3, 1, 2""")
        for r in range(4):
            a(f"v_cmp_eq_u32 vcc, {r}, v6\nv_cndmask_b32 v{8+r}, v91, v90, vcc\nv_cndmask_b32 v{12+r}, v91, v92, vcc")
        a(f"""v_lshrrev_b32 v6, 3, v3
        v_lshlrev_b32 v5, 11, v6
        v_lshl_add_u32 v5, v2, 6, v5
        s_lshl_b32 s44, s30, 8
        s_lshl_b32 s49, s3, 3
        s_add_u32 s44, s44, s49
        s_add_u32 s44, s44, {L_B}
        v_add_u32 v5, s44, v5
        v_lshlrev_b32 v105, 4, v1
        v_add_u32 v104, {L_B}, v105
        v_lshrrev_b32 v90, 1, v2
        v_and_b32 v91, 1, v2
        v_lshl_add_u32 v92, v3, 1, v91
        s_lshl_b32 s44, s3, 10
        s_add_u32 s44, s44, {L_B}
        v_lshl_add_u32 v106, v90, 5, v92
        v_lshl_add_u32 v106, v106, 4, s44
        v_and_b32 v93, 3, v92
        v_lshrrev_b32 v94, 2, v92
        v_lshl_add_u32 v93, v90, 2, v93
        v_lshl_add_u32 v93, v94, 3, v93
        v_lshl_add_u32 v107, v93, 4, s44
        s_lshl_b32 s44, s3, 11
        s_add_u32 s44, s44, {L_B}
        v_lshl_add_u32 v102, v92, 2, v90
        v_lshl_add_u32 v102, v102, 4, s44""")
        a(f"""v_lshlrev_b32 v140, 6, v6
        v_lshl_add_u32 v140, v2, 4, v140
        v_lshrrev_b32 v141, 3, v1
        v_lshlrev_b32 v141, 10, v141
        v_and_b32 v90, 7, v1
        v_lshl_add_u32 v141, v90, 4, v141
        v_lshl_add_u32 v142, v6, 2, v2
        v_lshlrev_b32 v142, 2, v142
        s_lshl_b32 s58, s31, 10
        s_lshl_b32 s44, s3, 7
        s_add_u32 s58, s58, s44
        s_add_u32 s58, s58, {WS_OF}
        s_lshl_b32 s59, s31, 13
        s_add_u32 s59, s59, s44
        s_add_u32 s59, s59, {WS_HP}""")
    def small_loads():
        a(f"""s_mov_b32 s40, s18
        s_mov_b32 s41, s19
        s_mov_b32 s42, 7168
        v_and_b32 v90, 3, v1
        v_lshl_add_u32 v90, v90, 2, v2
        v_lshlrev_b32 v90, 1, v90
        s_mul_i32 s44, s31, 224
        s_lshl_b32 s49, s3, 5
        s_add_u32 s44, s44, s49
        buffer_load_ushort v101, v90, s[40:43], s44 offen""")
        ops.append("b1")
        a("""s_lshl_b32 s44, s30, 8
        s_lshl_b32 s49, s31, 3
        s_add_u32 s60, s44, s49
        v_lshlrev_b32 v90, 1, v2
        v_and_b32 v6, 1, v1
        v_lshl_add_u32 v143, v6, 11, v90
        s_cmp_eq_u32 s3, 2
        s_cbranch_scc0 Lnocons
        s_mov_b32 s40, s22
        s_mov_b32 s41, s23
        s_mov_b32 s42, 2048
        buffer_load_ushort v144, v90, s[40:43], s60 offen
        s_mov_b32 s40, s4
        s_mov_b32 s41, s5
        s_mov_b32 s42, 4096
        buffer_load_ushort v145, v143, s[40:43], s60 offen
        Lnocons:""")
    def gathers():
        a("buffer_load_dwordx4 v[96:99], v141, s[36:39], s59 offen sc1"); ops.append("gh")
        a("buffer_load_dwordx3 v[92:94], v140, s[36:39], s58 offen sc1"); ops.append("go")
    done = set()
    for n in range(24):
        d = D0 if (D0 and n < 8) else D
        if n % 4 == 0 and n: setup(n // 4)
        landed = -1
        if n >= d:
            wait_for(n - d); landed = n - d
        issue(n)
        if n == min(D0 or D, 4) - 1: consts()
        if landed >= 3 and "q" not in done:
            done.add("q"); stamp(2)
            a(f"s_barrier\nds_read_b32 v100, v7 offset:{C_TAG}")
            gemv_partial(O_XN, 16, O_RQ, 106, C_QP, WS_QP, 3)
        if landed >= 7 and "k" not in done:
            done.add("k"); signal(C_K); stamp(4); small_loads()
        if landed >= 11 and "v" not in done:
            done.add("v"); signal(C_V); stamp(5)
        if landed >= 15 and "h" not in done:
            done.add("h"); stamp(6)
            gemv_partial(O_Y, 16, O_RH, 107, C_HP, WS_HP, 7, chk=C_Y)
        if n == gpos: gathers()
    assert done == {"q","k","v","h"}
    wait_for("go")
    a("s_mov_b32 s61, 0\nLchk:")
    a("s_bitcmp1_b32 s61, 0\ns_cbranch_scc1 Lhdone")
    tagchk24(96, 90, 91)
    a("""v_bitop3_b32 v90, v90, v91, s51 bitop3:0xa8
    v_cmp_ne_u32 vcc, 0, v90
    s_cbranch_vccnz Lhdone""")
    stamp(8)
    for k in range(4): a(f"v_and_b32 v{96+k}, s50, v{96+k}")
    treduce(96)
    a("v_lshlrev_b32 v101, 16, v101\nv_add_f32 v96, v96, v96 row_ror:8 row_mask:0xf bank_mask:0xf")
    bf16r(96, 96)
    a("v_add_f32 v96, v96, v101")
    bf16r(96, 96)
    c0 = -2 * LOG2E * 0.7978845608028654; c1 = c0 * 0.044715
    a(f"""v_mul_f32 v97, v96, v96
    v_mov_b32 v98, {f2h(c0)}
    v_fmac_f32 v98, {f2h(c1)}, v97
    v_mul_f32 v98, v98, v96
    v_exp_f32 v98, v98
    v_add_f32 v98, 1.0, v98
    v_rcp_f32 v98, v98
    v_mul_f32 v96, v96, v98
    v_cvt_pk_bf16_f32 v96, v96, v96""")
    for t in range(4): a(f"ds_bpermute_b32 v{146+t}, v142, v96 offset:{64*t}")
    a("s_waitcnt lgkmcnt(0)")
    for t in range(4):
        for r in range(4): a(f"v_perm_b32 v{108+4*t+r}, v{146+t}, v{146+t}, v{8+r}")
    a("s_bitset1_b32 s61, 0\nLhdone:")
    a("""s_bitcmp1_b32 s61, 1
    s_cbranch_scc1 Lodone
    v_cmp_ne_u32 vcc, v94, v100
    s_cbranch_vccnz Lodone""")
    stamp(9)
    build_A(64, 92)
    a("""s_bitset1_b32 s61, 1
    Lodone:
    s_cmp_eq_u32 s61, 3
    s_cbranch_scc1 Lboth
    s_bitcmp1_b32 s61, 0
    s_cbranch_scc1 Lr1
    buffer_load_dwordx4 v[96:99], v141, s[36:39], s59 offen sc1
    Lr1:
    s_bitcmp1_b32 s61, 1
    s_cbranch_scc1 Lr2
    buffer_load_dwordx3 v[92:94], v140, s[36:39], s58 offen sc1
    Lr2:
    s_waitcnt vmcnt(0)""")
    spin_bound("Lchk")
    a("Lboth:")
    wait_for(19)
    for t in range(4):
        a(f"v_mfma_f32_16x16x32_bf16 v[80:83], v[{64+4*t}:{67+4*t}], v[{32+4*t}:{35+4*t}], {'0' if t == 0 else 'v[80:83]'}")
    for t in range(4):
        wait_for(20 + t)
        a(f"v_mfma_f32_16x16x32_bf16 v[84:87], v[{108+4*t}:{111+4*t}], v[{48+4*t}:{51+4*t}], {'0' if t == 0 else 'v[84:87]'}")
    stamp(10)
    a(f"""ds_write_b128 v102, v[80:83] offset:{O_FIN}
    ds_write_b128 v102, v[84:87] offset:{O_FIN+32}
    s_waitcnt lgkmcnt(0)
    s_barrier
    s_cmp_gt_u32 s3, 2
    s_cbranch_scc1 Lexit
    s_cmp_eq_u32 s3, 2
    s_cbranch_scc1 Lcons
    s_lshl_b32 s49, s3, 10
    v_add_u32 v104, s49, v104""")
    for w in range(8): a(f"ds_read_b128 v[{108+4*w}:{111+4*w}], v104 offset:{O_FIN+2048*w}")
    a(f"""s_lshl_b32 s44, s30, 16
    s_add_u32 s44, s44, s49
    s_lshl_b32 s49, s31, 11
    s_add_u32 s44, s44, s49
    s_add_u32 s44, s44, {WS_FP}
    s_waitcnt lgkmcnt(0)""")
    for (x, y) in ((0,1),(2,3),(4,5),(6,7),(0,2),(4,6),(0,4)):
        for h in (0, 2):
            a(f"v_pk_add_f32 v[{108+4*x+h}:{109+4*x+h}], v[{108+4*x+h}:{109+4*x+h}], v[{108+4*y+h}:{109+4*y+h}]")
    for k in range(4): a(f"v_bfi_b32 v{108+k}, s50, v{108+k}, v100")
    a("buffer_store_dwordx4 v[108:111], v105, s[36:39], s44 offen sc1")
    stamp(11)
    a("s_branch Lexit")
    a(f"""Lcons:
    v_lshrrev_b32 v4, 2, v1
    v_lshlrev_b32 v4, 11, v4
    v_and_b32 v6, 3, v1
    v_lshl_add_u32 v4, v6, 4, v4
    s_lshl_b32 s44, s30, 16
    s_lshl_b32 s49, s31, 6
    s_add_u32 s44, s44, s49
    s_add_u32 s44, s44, {WS_FP}
    s_add_u32 s45, s44, 32768
    s_mov_b32 s40, s24
    s_mov_b32 s41, s25
    s_mov_b32 s42, 4096
    v_lshlrev_b32 v144, 16, v144
    v_lshlrev_b32 v145, 16, v145
    Lfpoll:
    buffer_load_dwordx4 v[16:19], v4, s[36:39], s44 offen sc1
    buffer_load_dwordx4 v[20:23], v4, s[36:39], s45 offen sc1
    s_waitcnt vmcnt(0)""")
    tagchk24(16, 24, 25); tagchk24(20, 26, 27)
    a("""v_or3_b32 v24, v24, v25, v26
    v_bitop3_b32 v24, v24, v27, s51 bitop3:0xa8
    v_cmp_ne_u32 vcc, 0, v24
    s_cbranch_vccz Lfok""")
    spin_bound("Lfpoll")
    a("Lfok:")
    stamp(11)
    for k in range(8): a(f"v_and_b32 v{16+k}, s50, v{16+k}")
    a("v_pk_add_f32 v[16:17], v[16:17], v[20:21]\nv_pk_add_f32 v[18:19], v[18:19], v[22:23]")
    treduce(16)
    a("v_add_f32 v16, v16, v16 row_ror:4 row_mask:0xf bank_mask:0xf\nv_add_f32 v16, v16, v16 row_ror:8 row_mask:0xf bank_mask:0xf")
    bf16r(16, 16)
    a("v_add_f32 v17, v16, v144 quad_perm:[2,3,2,3] row_mask:0xf bank_mask:0xf")
    bf16r(17, 17)
    a(f"""v_mul_f32 v18, {f2h(-LOG2E)}, v17
    v_exp_f32 v18, v18
    v_add_f32 v18, 1.0, v18
    v_rcp_f32 v18, v18
    v_mul_f32 v17, v17, v18""")
    bf16r(17, 17)
    a("v_mul_f32 v16, v16, v17")
    bf16r(16, 16)
    a(f"""v_add_f32 v16, v16, v145
    v_cvt_pk_bf16_f32 v16, v16, v16
    s_mov_b32 exec_lo, 0x00030003
    s_mov_b32 exec_hi, 0x00030003
    buffer_store_short v16, v143, s[40:43], s60 offen {st_out}
    s_cmp_eq_u32 s2, 0
    s_cbranch_scc0 Lnoep
    s_mov_b64 exec, 1
    buffer_store_dword v100, v105, s[36:39], 0 offen sc1
    Lnoep:
    s_mov_b64 exec, -1""")
    stamp(12)
    a("s_branch Lexit")

    a(f"""Lhelper:
    s_sub_u32 s53, s3, 8
    v_mov_b32 v7, {L_B}
    v_mov_b32 v103, 1
    v_lshlrev_b32 v105, 4, v1
    s_mov_b32 s50, 0xffffff00
    s_mov_b32 s51, 0xff
    s_mov_b32 s54, 0x00ff00ff
    s_mov_b32 s55, 0x00ff00ff
    s_mov_b32 s56, 0xff00ff00
    s_mov_b32 s57, 0xff00ff00
    s_mov_b32 s38, {WS_END}
    s_mov_b32 s42, 4096
    s_lshl_b32 s45, s53, 11
    s_waitcnt lgkmcnt(0)
    s_mov_b32 s36, s28
    s_mov_b32 s37, s29
    s_mov_b32 s40, s4
    s_mov_b32 s41, s5
    s_cmp_ge_u32 s53, 2
    s_cbranch_scc1 Lh23
    buffer_load_dwordx4 v[16:19], v105, s[40:43], s45 offen
    buffer_load_dwordx4 v[20:23], v105, s[40:43], s45 offen offset:1024
    s_add_u32 s45, s45, {L_B}
    v_add_u32 v104, s45, v105""")
    stamp(1)
    a("s_waitcnt vmcnt(0)")
    stamp(2)
    def layernorm(o_dst):
        for k in range(8): a(f"v_lshlrev_b32 v{32+2*k}, 16, v{16+k}\nv_and_b32 v{33+2*k}, 0xffff0000, v{16+k}")
        a("""v_pk_add_f32 v[48:49], v[32:33], v[34:35]
        v_pk_add_f32 v[50:51], v[36:37], v[38:39]
        v_pk_add_f32 v[52:53], v[40:41], v[42:43]
        v_pk_add_f32 v[54:55], v[44:45], v[46:47]
        v_pk_add_f32 v[48:49], v[48:49], v[50:51]
        v_pk_add_f32 v[52:53], v[52:53], v[54:55]
        v_pk_add_f32 v[48:49], v[48:49], v[52:53]
        v_add_f32 v8, v48, v49""")
        allred64(8, 9)
        a(f"v_mul_f32 v8, {f2h(1/1024)}, v8")
        for k in range(8): a(f"v_pk_add_f32 v[{48+2*k}:{49+2*k}], v[{32+2*k}:{33+2*k}], v[8:9] op_sel_hi:[1,0] neg_lo:[0,1] neg_hi:[0,1]")
        a("v_pk_mul_f32 v[10:11], v[48:49], v[48:49]\nv_pk_mul_f32 v[12:13], v[50:51], v[50:51]")
        for k in range(2, 8): a(f"v_pk_fma_f32 v[{10+2*(k&1)}:{11+2*(k&1)}], v[{48+2*k}:{49+2*k}], v[{48+2*k}:{49+2*k}], v[{10+2*(k&1)}:{11+2*(k&1)}]")
        a("v_pk_add_f32 v[10:11], v[10:11], v[12:13]\nv_add_f32 v10, v10, v11")
        bf16r(8, 8)
        allred64(10, 11)
        a(f"v_mul_f32 v10, {f2h(1/1024)}, v10")
        bf16r(10, 10)
        a(f"v_add_f32 v10, {f2h(1e-5)}, v10")
        bf16r(10, 10)
        a("v_sqrt_f32 v10, v10")
        for k in range(8): a(f"v_pk_add_f32 v[{32+2*k}:{33+2*k}], v[{32+2*k}:{33+2*k}], v[8:9] op_sel_hi:[1,0] neg_lo:[0,1] neg_hi:[0,1]")
        bf16r(10, 10)
        a("v_rcp_f32 v10, v10")
        for k in range(8): a(f"v_cvt_pk_bf16_f32 v{16+k}, v{32+2*k}, v{33+2*k}")
        for k in range(8): a(f"v_lshlrev_b32 v{32+2*k}, 16, v{16+k}\nv_and_b32 v{33+2*k}, 0xffff0000, v{16+k}")
        for k in range(8): a(f"v_pk_mul_f32 v[{32+2*k}:{33+2*k}], v[{32+2*k}:{33+2*k}], v[10:11] op_sel_hi:[1,0]")
        for k in range(8): a(f"v_cvt_pk_bf16_f32 v{16+k}, v{32+2*k}, v{33+2*k}")
        a(f"ds_write_b128 v104, v[16:19] offset:{o_dst}\nds_write_b128 v104, v[20:23] offset:{o_dst+1024}")
    a("s_mov_b32 s62, 0\nLln:")
    layernorm(O_XN)
    a(f"""s_cmp_eq_u32 s62, 1
    s_cbranch_scc1 Lln2
    s_waitcnt lgkmcnt(0)""")
    stamp(3)
    a(f"""s_barrier
    s_mov_b32 s62, 1
    v_add_u32 v104, {O_Y-O_XN}, v104
    s_branch Lln
    Lln2:""")
    signal(C_Y)
    a(f"ds_read_b32 v100, v7 offset:{C_TAG}\ns_branch Lattn")
    a("""Lh23:
    s_cmp_eq_u32 s53, 3
    s_cbranch_scc1 Lh3
    v_mov_b32 v4, 0
    buffer_load_dword v100, v4, s[36:39], 0 offen sc1
    v_mov_b32 v8, 0
    v_mov_b32 v9, 0
    v_mov_b32 v10, 0
    v_mov_b32 v11, 0""")
    a(f"""ds_write_b128 v7, v[8:11] offset:{O_CNT}
    s_waitcnt vmcnt(0)
    v_add_u32 v100, 0x9e3779b1, v100
    v_mov_b32 v11, v100
    ds_write_b128 v7, v[8:11] offset:{O_CNT+16}
    s_waitcnt lgkmcnt(0)
    s_barrier""")
    a(f"""v_lshrrev_b32 v4, 3, v1
    v_lshlrev_b32 v4, 10, v4
    v_and_b32 v6, 7, v1
    v_lshl_add_u32 v4, v6, 4, v4
    s_lshl_b32 s45, s31, 13
    s_lshl_b32 s44, s30, 7
    s_add_u32 s45, s45, s44
    s_add_u32 s45, s45, {WS_QP}
    s_lshr_b32 s46, s30, 2
    s_lshl_b32 s46, s46, 14
    s_lshl_b32 s44, s31, 9
    s_add_u32 s46, s46, s44
    s_and_b32 s44, s30, 3
    s_lshl_b32 s44, s44, 7
    s_add_u32 s46, s46, s44
    s_add_u32 s46, s46, {WS_QF}""")
    wait_lds(C_QP, 8)
    stamp(2)
    a("""L1a:
    buffer_load_dwordx4 v[16:19], v4, s[36:39], s45 offen sc1
    s_waitcnt vmcnt(0)""")
    tagchk24(16, 24, 25)
    a("""v_bitop3_b32 v24, v24, v25, s51 bitop3:0xa8
    v_cmp_ne_u32 vcc, 0, v24
    s_cbranch_vccz L1aok""")
    spin_bound("L1a")
    a("L1aok:")
    for k in range(4): a(f"v_and_b32 v{16+k}, s50, v{16+k}")
    treduce(16)
    a("v_mov_b32 v22, v100\nv_mov_b32 v23, v100\nv_add_f32 v16, v16, v16 row_ror:8 row_mask:0xf bank_mask:0xf")
    regather(16, 20)
    a("""s_mov_b64 exec, 0xff
    buffer_store_dwordx4 v[20:23], v105, s[36:39], s46 offen sc1
    s_mov_b64 exec, -1""")
    stamp(3)
    a("s_branch Lattn")
    a("Lh3:")
    if prefetch:
        a(f"""s_getpc_b64 s[46:47]
        Lpc:
        s_sub_u32 s46, s46, Lpc-{KNAME}
        s_subb_u32 s47, s47, 0
        s_lshl_b32 s44, s31, 8
        s_min_u32 s44, s44, Lend-{KNAME}-132
        s_add_u32 s46, s46, s44
        s_addc_u32 s47, s47, 0
        s_load_dword s48, s[46:47], 0
        s_load_dword s49, s[46:47], 128
        s_waitcnt lgkmcnt(0)""")
    a(f"s_barrier\nds_read_b32 v100, v7 offset:{C_TAG}")

    a(f"""Lattn:
    v_xor_b32 v8, v2, v3
    v_lshlrev_b32 v8, 4, v8
    v_lshl_add_u32 v8, v3, 8, v8
    s_lshl_b32 s44, s53, 13
    v_add_u32 v8, s44, v8
    v_xor_b32 v9, 64, v8
    v_xor_b32 v10, 128, v8
    v_xor_b32 v11, 192, v8""")
    for r in range(48, 80): a(f"v_mov_b32 v{r}, 0")
    a(f"""v_lshrrev_b32 v12, 5, v1
    s_lshl_b32 s44, s53, 1
    v_add_u32 v12, s44, v12
    v_mul_u32_u24 v12, 288, v12
    v_and_b32 v6, 31, v1
    v_lshl_add_u32 v12, v6, 3, v12
    v_add_u32 v12, {L_B}, v12
    v_and_b32 v6, 7, v3
    v_mul_u32_u24 v13, 288, v6
    v_lshl_add_u32 v13, v2, 4, v13
    v_add_u32 v13, {L_B}, v13
    v_lshlrev_b32 v132, 4, v6
    v_add_u32 v132, {L_B}, v132
    v_lshl_add_u32 v15, v2, 7, v132
    v_and_b32 v14, 8, v3
    s_lshl_b32 s44, s53, 9
    v_add3_u32 v14, v14, v15, s44
    s_lshl_b32 s44, s53, 2
    v_add_u32 v133, s44, v132""")
    a(f"""v_lshrrev_b32 v4, 2, v3
    v_lshl_add_u32 v4, v2, 2, v4
    v_and_b32 v5, 7, v4
    v_lshlrev_b32 v5, 1, v5
    v_bfe_u32 v134, v1, 1, 1
    s_lshl_b32 s44, s53, 2
    v_add_u32 v134, s44, v134
    v_xor_b32 v134, v134, v5
    v_lshlrev_b32 v134, 4, v134
    v_lshl_add_u32 v134, v4, 8, v134
    v_and_b32 v5, 1, v1
    v_lshl_add_u32 v134, v5, 3, v134
    v_add_u32 v134, {L_V}, v134
    v_xor_b32 v135, 32, v134""")
    a(f"""v_lshrrev_b32 v4, 3, v3
    v_lshl_add_u32 v4, v4, 2, v2
    v_lshlrev_b32 v4, 12, v4
    v_lshl_add_u32 v136, v6, 4, v4
    s_lshl_b32 s47, s30, 17
    s_add_u32 s47, s47, {WS_OP}
    s_lshl_b32 s44, s31, 12
    s_add_u32 s48, s47, s44
    s_lshl_b32 s44, s31, 7
    s_add_u32 s47, s47, s44
    s_lshl_b32 s44, s53, 15
    s_add_u32 s47, s47, s44
    s_lshl_b32 s45, s30, 12
    s_lshl_b32 s44, s53, 10
    s_add_u32 s45, s45, s44
    s_add_u32 s45, s45, {WS_QF}""")
    wait_lds(C_K, 8)
    stamp(4)
    for u in range(2):
        for c in range(4): a(f"ds_read_b128 v[{16+16*u+4*c}:{19+16*u+4*c}], v{8+c} offset:{L_K+4096*u}")
    a("""L1b:
    buffer_load_dwordx3 v[128:130], v105, s[36:39], s45 offen sc1
    s_waitcnt vmcnt(0)
    v_cmp_ne_u32 vcc, v130, v100
    s_cbranch_vccz L1bok""")
    spin_bound("L1b")
    a(f"L1bok:\nds_write_b64 v12, v[128:129] offset:{O_QL}")
    signal(C_Q)
    stamp(5)
    wait_lds(C_Q, 4)
    for u in range(2):
        a(f"s_mov_b64 exec, s[{54+2*u}:{55+2*u}]")
        for c in range(4): a(f"ds_read_b128 v[{48+16*u+4*c}:{51+16*u+4*c}], v13 offset:{O_QL+64*c}")
    a("s_mov_b64 exec, -1\ns_waitcnt lgkmcnt(0)")
    stamp(6)
    first = True
    for c in range(4):
        for u in range(2):
            a(f"v_mfma_f32_16x16x32_bf16 v[128:131], v[{16+16*u+4*c}:{19+16*u+4*c}], v[{48+16*u+4*c}:{51+16*u+4*c}], {'0' if first else 'v[128:131]'}")
            first = False
    sc = 128 ** -0.5 * LOG2E
    a(f"""s_mov_b32 s49, {f2h(sc)}
    v_max3_f32 v4, v128, v129, v130
    v_max_f32 v4, v4, v131
    v_max_f32 v4, v4, v4 row_ror:8 row_mask:0xf bank_mask:0xf""")
    allred_rows("v_max_f32", 4, 5)
    a("v_mul_f32 v4, s49, v4")
    for r in range(4): a(f"v_fma_f32 v{128+r}, v{128+r}, s49, -v4")
    for r in range(4): a(f"v_exp_f32 v{128+r}, v{128+r}")
    a(f"""v_add_f32 v5, v128, v129
    v_add_f32 v6, v130, v131
    v_cvt_pk_bf16_f32 v128, v128, v129
    v_cvt_pk_bf16_f32 v129, v130, v131
    v_add_f32 v5, v5, v6
    ds_write_b64 v14, v[128:129] offset:{O_PL}
    ds_write_b32 v133, v4 offset:{O_STM}
    v_add_f32 v5, v5, v5 row_ror:8 row_mask:0xf bank_mask:0xf""")
    allred_rows("v_add_f32", 5, 6)
    a(f"ds_write_b32 v133, v5 offset:{O_STL}")
    signal(C_P)
    stamp(7)
    wait_lds(C_V, 8)
    for s in range(4):
        for t in range(2):
            for u in range(2):
                r = 16 + 8*s + 4*t + 2*u
                a(f"ds_read_b64_tr_b16 v[{r}:{r+1}], v{134+t} offset:{8192*s+4096*u}")
    wait_lds(C_P, 4)
    stamp(8)
    a(f"ds_read_b128 v[8:11], v132 offset:{O_STM}\nds_read_b128 v[84:87], v132 offset:{O_STL}")
    for t in range(2):
        a(f"s_mov_b64 exec, s[{54+2*t}:{55+2*t}]")
        for s in range(4): a(f"ds_read_b128 v[{48+16*t+4*s}:{51+16*t+4*s}], v15 offset:{O_PL+512*s}")
    a("s_mov_b64 exec, -1\ns_waitcnt lgkmcnt(0)")
    for s in range(4):
        for t in range(2):
            a(f"v_mfma_f32_16x16x32_bf16 v[{112+4*s}:{115+4*s}], v[{16+8*s+4*t}:{19+8*s+4*t}], v[{48+16*t+4*s}:{51+16*t+4*s}], {'0' if t == 0 else f'v[{112+4*s}:{115+4*s}]'}")
    a("v_max3_f32 v4, v8, v9, v10\nv_max_f32 v4, v4, v11")
    for s in range(4): a(f"v_sub_f32 v{8+s}, v{8+s}, v4")
    for s in range(4): a(f"v_exp_f32 v{8+s}, v{8+s}")
    a("""v_mul_f32 v5, v8, v84
    v_fmac_f32 v5, v9, v85
    v_fmac_f32 v5, v10, v86
    v_fmac_f32 v5, v11, v87
    v_rcp_f32 v6, v5
    v_log_f32 v5, v5
    v_mov_b32 v83, v100""")
    for s in range(4): a(f"v_mul_f32 v{8+s}, v{8+s}, v6")
    a("v_add_f32 v82, v4, v5")
    for r in range(4): a(f"v_mul_f32 v{88+r}, v8, v{112+r}")
    for s in range(1, 4):
        for r in range(4): a(f"v_fmac_f32 v{88+r}, v{8+s}, v{112+4*s+r}")
    a("""v_cvt_pk_bf16_f32 v80, v88, v89
    v_cvt_pk_bf16_f32 v81, v90, v91
    buffer_store_dwordx4 v[80:83], v136, s[36:39], s47 offen sc1""")
    stamp(9)
    a("s_cmp_eq_u32 s53, 3\ns_cbranch_scc0 Lexit")
    a(f"""s_and_b32 s46, s30, 3
    s_lshl_b32 s46, s46, 13
    s_lshr_b32 s44, s31, 2
    s_lshl_b32 s44, s44, 7
    s_add_u32 s46, s46, s44
    s_lshr_b32 s44, s30, 2
    s_lshl_b32 s44, s44, 6
    s_add_u32 s46, s46, s44
    s_and_b32 s44, s31, 3
    s_lshl_b32 s44, s44, 4
    s_add_u32 s46, s46, s44
    s_add_u32 s46, s46, {WS_OF}
    v_lshlrev_b32 v12, 10, v1
    L2a:""")
    for i in range(4): a(f"buffer_load_dwordx4 v[{32+4*i}:{35+4*i}], v105, s[36:39], s48 offen offset:{1024*i} sc1")
    a("""s_waitcnt vmcnt(0)
    v_bitop3_b32 v4, v35, v39, v100 bitop3:0x7e
    v_bitop3_b32 v5, v43, v47, v100 bitop3:0x7e
    v_or_b32 v4, v4, v5
    v_cmp_ne_u32 vcc, 0, v4
    s_cbranch_vccz L2aok""")
    spin_bound("L2a")
    a("L2aok:")
    stamp(10)
    a("""v_max3_f32 v4, v34, v38, v42
    v_max_f32 v4, v4, v46
    v_max_f32 v4, v4, v4 row_ror:8 row_mask:0xf bank_mask:0xf""")
    allred_rows("v_max_f32", 4, 5)
    for i in range(4): a(f"v_sub_f32 v{8+i}, v{34+4*i}, v4")
    for i in range(4): a(f"v_exp_f32 v{8+i}, v{8+i}")
    for i in range(4):
        a(f"""v_lshlrev_b32 v{48+4*i}, 16, v{32+4*i}
        v_and_b32 v{49+4*i}, 0xffff0000, v{32+4*i}
        v_lshlrev_b32 v{50+4*i}, 16, v{33+4*i}
        v_and_b32 v{51+4*i}, 0xffff0000, v{33+4*i}""")
    a("v_add_f32 v5, v8, v9\nv_add_f32 v6, v10, v11\nv_add_f32 v5, v5, v6")
    for k in range(4): a(f"v_mul_f32 v{16+k}, v8, v{48+k}")
    a("v_add_f32 v5, v5, v5 row_ror:8 row_mask:0xf bank_mask:0xf")
    for i in range(1, 4):
        for k in range(4): a(f"v_fmac_f32 v{16+k}, v{8+i}, v{48+4*i+k}")
    allred_rows("v_add_f32", 5, 6)
    treduce(16)
    a("""v_rcp_f32 v5, v5
    v_mov_b32 v22, v100
    v_mov_b32 v23, v100
    v_add_f32 v16, v16, v16 row_ror:8 row_mask:0xf bank_mask:0xf
    v_mul_f32 v16, v16, v5""")
    regather(16, 20)
    a("""s_mov_b64 exec, 0xff
    buffer_store_dwordx4 v[20:23], v12, s[36:39], s46 offen sc1
    s_mov_b64 exec, -1""")
    stamp(11)

    a("Lexit:")
    if diag:
        stamp(15)
        a(f"""s_waitcnt lgkmcnt(0)
        s_mov_b32 s36, s28
        s_mov_b32 s37, s29
        s_mov_b32 s38, 0x10000000
        s_mul_i32 s44, s2, 12
        s_add_u32 s44, s44, s3
        s_lshl_b32 s44, s44, 7
        s_add_u32 s44, s44, {WS_STAMP}
        s_mov_b64 exec, 1
        v_mov_b32 v4, 0""")
        for i in range(16): a(f"v_mov_b32 v6, s{64+2*i}\nbuffer_store_dword v6, v4, s[36:39], s44 offen offset:{4*i}")
        a("v_mov_b32 v6, s52\nbuffer_store_dword v6, v4, s[36:39], s44 offen offset:64")
    a("Lend:\ns_endpgm")

    head = [l for l in open(REF).read().split("\n") if l.startswith(";") and "@launch" not in l]
    out = "\n".join(head) + f"\n; @launch grid=(256,1,1) block=(768,1,1) lds={LDS_BYTES}\n"
    out += f""".amdgcn_target "amdgcn-amd-amdhsa--gfx950"
.text
.globl {KNAME}
.p2align 8
.type {KNAME},@function
{KNAME}:
{a.text()}
.section .rodata,"a"
.p2align 6
.amdhsa_kernel {KNAME}
  .amdhsa_next_free_vgpr 152
  .amdhsa_next_free_sgpr 102
  .amdhsa_accum_offset 152
  .amdhsa_group_segment_fixed_size 0
  .amdhsa_kernarg_size 104
  .amdhsa_user_sgpr_count 2
  .amdhsa_user_sgpr_kernarg_segment_ptr 1
  .amdhsa_system_sgpr_workgroup_id_x 1
  .amdhsa_float_denorm_mode_32 3
.end_amdhsa_kernel
"""
    return out

if __name__ == "__main__":
    dst = sys.argv[1] if len(sys.argv) > 1 else "recurrent_scan__sliding_block_cached__mixer_channel_mlp__decode.s"
    open(dst, "w").write(gen())
```
